```python
import torch

def _softmax(x, axis=-1):
    return torch.softmax(x, dim=axis)
def _gelu(x):
    return torch.nn.functional.gelu(x, approximate="tanh")
def _silu(x):
    return torch.nn.functional.silu(x)
def _sigmoid(x):
    return torch.sigmoid(x)
def _layernorm(x, axis=-1, eps=1e-5):
    m = x.mean(dim=axis, keepdim=True)
    v = x.var(dim=axis, keepdim=True, unbiased=False)
    return (x - m) / torch.sqrt(v + eps)
def _scatter_add(tgt, idx, src, axis=0):
    return tgt.clone().index_add_(axis, idx, src)
def _segment_sum(src, seg, n):
    out = torch.zeros((n,) + src.shape[1:], dtype=src.dtype)
    return out.index_add_(0, seg, src)
def _pad(x, pw):
    flat = tuple(v for pair in reversed(pw) for v in pair)
    return torch.nn.functional.pad(x, flat)

kernel_name = 'standalone__dcn_v2_cross__recsys'

def setup_inputs():

    _w = (lambda a: (lambda t: t.to(torch.bfloat16) if t.is_floating_point() else t)(torch.as_tensor(a)))
    B, F, D, L = 1024, 26, 32, 6
    Din = min(F * D, 1024)
    return {
        "x0": _w((lambda *s: torch.randn(*s, dtype=torch.bfloat16) * 0.05)(B, Din)),
        "ws": _w((lambda *s: torch.randn(*s, dtype=torch.bfloat16) * 0.05)(L, Din, Din)),
        "bs": _w((lambda *s: torch.randn(*s, dtype=torch.bfloat16) * 0.05)(L, Din)),
    }

def reference(x0, ws, bs):
    x = x0
    for l in range(ws.shape[0]):
        x = x0 * (x @ ws[l] + bs[l]) + x
    return x
```

```python
import sys
NAME = "standalone__dcn_v2_cross__recsys"
B, D, L = 1024, 832, 6
ROWB = D*2
XBYTES = B*ROWB
WBYTES = D*ROWB
NS = 8
STAGE = 16384
NCH = 13

out = []
def e(s): out.append(s)

def kernel(l, label):
    e(f".globl {label}")
    e(".p2align 8")
    e(f".type {label},@function")
    e(f"{label}:")
    e("  s_cmp_ge_u32 s2, 208")
    e(f"  s_cbranch_scc1 L_done{l}")
    e("  s_load_dwordx4 s[4:7], s[0:1], 0")
    e("  s_load_dwordx4 s[28:31], s[0:1], 16")
    e("  s_load_dwordx2 s[32:33], s[0:1], 40")
    e("  s_and_b32 s34, s2, 7")
    e("  s_lshr_b32 s35, s2, 3")
    e("  s_cmp_ge_u32 s35, 13")
    e("  s_cselect_b32 s36, 1, 0")
    e("  s_lshl_b32 s34, s34, 1")
    e("  s_add_u32 s34, s34, s36")
    e("  s_mul_i32 s36, s36, 13")
    e("  s_sub_u32 s35, s35, s36")
    e("  v_and_b32 v1, 63, v0")
    e("  v_lshrrev_b32 v2, 6, v0")
    e("  s_nop 0")
    e("  v_readfirstlane_b32 s37, v2")
    e("  s_waitcnt lgkmcnt(0)")
    if l == 0:
        e("  s_mov_b32 s8, s4"); e("  s_mov_b32 s9, s5")
    else:
        e(f"  s_add_u32 s8, s32, {(l-1)*XBYTES}"); e("  s_addc_u32 s9, s33, 0")
    e(f"  s_mov_b32 s10, {XBYTES}"); e("  s_mov_b32 s11, 0x20000")
    e(f"  s_add_u32 s12, s6, {l*WBYTES}"); e("  s_addc_u32 s13, s7, 0")
    e(f"  s_mov_b32 s14, {WBYTES}"); e("  s_mov_b32 s15, 0x20000")
    if l == L-1:
        e("  s_mov_b32 s16, s30"); e("  s_mov_b32 s17, s31")
    else:
        e(f"  s_add_u32 s16, s32, {l*XBYTES}"); e("  s_addc_u32 s17, s33, 0")
    e(f"  s_mov_b32 s18, {XBYTES}"); e("  s_mov_b32 s19, 0x20000")
    e("  s_mov_b32 s20, s4"); e("  s_mov_b32 s21, s5")
    e(f"  s_mov_b32 s22, {XBYTES}"); e("  s_mov_b32 s23, 0x20000")
    e(f"  s_add_u32 s24, s28, {l*ROWB}"); e("  s_addc_u32 s25, s29, 0")
    e(f"  s_mov_b32 s26, {ROWB}"); e("  s_mov_b32 s27, 0x20000")
    e("  s_lshr_b32 s38, s37, 1")
    e("  s_and_b32 s39, s37, 1")
    e("  v_and_b32 v3, 31, v1")
    e("  v_lshrrev_b32 v4, 5, v1")
    e("  s_lshl_b32 s40, s34, 6")
    e("  s_lshl_b32 s41, s38, 5")
    e("  s_add_u32 s40, s40, s41")
    e("  v_add_u32 v5, s40, v3")
    e(f"  s_movk_i32 s42, {ROWB}")
    e("  v_mul_lo_u32 v5, v5, s42")
    e("  s_lshl_b32 s40, s35, 7")
    e("  s_lshl_b32 s41, s39, 6")
    e("  s_add_u32 s40, s40, s41")
    e("  v_lshlrev_b32 v6, 5, v4")
    e("  v_add_u32 v6, s40, v6")
    e("  v_add_u32 v5, v5, v6")
    e("  buffer_load_dwordx4 v[16:19], v5, s[20:23], 0 offen")
    e("  buffer_load_dwordx4 v[20:23], v5, s[20:23], 0 offen offset:16")
    e("  buffer_load_dwordx4 v[24:27], v5, s[8:11], 0 offen")
    e("  buffer_load_dwordx4 v[28:31], v5, s[8:11], 0 offen offset:16")
    e("  buffer_load_dwordx4 v[32:35], v6, s[24:27], 0 offen")
    e("  buffer_load_dwordx4 v[36:39], v6, s[24:27], 0 offen offset:16")
    e("  v_lshrrev_b32 v7, 3, v1")
    e("  v_and_b32 v8, 7, v1")
    e("  v_lshrrev_b32 v9, 1, v7")
    e("  v_xor_b32 v10, v8, v9")
    e("  v_xor_b32 v11, 4, v10")
    e("  s_lshl_b32 s40, s37, 4")
    e("  v_add_u32 v12, s40, v7")
    e("  v_mul_lo_u32 v12, v12, s42")
    e("  v_lshlrev_b32 v10, 4, v10")
    e("  v_lshlrev_b32 v11, 4, v11")
    e("  v_add_u32 v10, v10, v12")
    e("  v_add_u32 v11, v11, v12")
    e(f"  v_add_u32 v11, {8*ROWB}, v11")
    e("  v_and_b32 v9, 1, v9")
    e("  v_lshlrev_b32 v9, 2, v9")
    e("  v_xor_b32 v9, v8, v9")
    e("  v_lshlrev_b32 v9, 4, v9")
    e("  v_add_u32 v13, v9, v12")
    e(f"  v_add_u32 v14, {8*ROWB}, v13")
    e(f"  s_mul_i32 s43, s34, {64*ROWB}")
    e("  s_lshl_b32 s44, s35, 7")
    e("  s_lshl_b32 s45, s37, 11")
    def dma(j):
        st = (j % NS)*STAGE
        e(f"  s_add_u32 m0, s45, {st}")
        e(f"  s_add_u32 s46, s43, {j*128}")
        e(f"  buffer_load_dwordx4 v10, s[8:11], s46 offen lds")
        e(f"  s_add_u32 m0, s45, {st+1024}")
        e(f"  s_add_u32 s47, s44, {j*64*ROWB}")
        e(f"  buffer_load_dwordx4 v11, s[8:11], s46 offen lds")
        e(f"  s_add_u32 m0, s45, {st+8192}")
        e(f"  s_nop 0")
        e(f"  buffer_load_dwordx4 v13, s[12:15], s47 offen lds")
        e(f"  s_add_u32 m0, s45, {st+8192+1024}")
        e(f"  s_nop 0")
        e(f"  buffer_load_dwordx4 v14, s[12:15], s47 offen lds")
    for j in range(NS-1):
        dma(j)
    e("  s_lshl_b32 s40, s38, 5")
    e("  v_add_u32 v40, s40, v3")
    e("  v_lshrrev_b32 v41, 1, v40")
    e("  v_and_b32 v41, 7, v41")
    e("  v_xor_b32 v41, v41, v4")
    e("  v_lshlrev_b32 v41, 4, v41")
    e("  v_lshlrev_b32 v40, 7, v40")
    e("  v_add_u32 v40, v40, v41")
    e("  v_xor_b32 v41, 32, v40")
    e("  v_xor_b32 v42, 64, v40")
    e("  v_xor_b32 v43, 96, v40")
    for i in range(4):
        e(f"  v_add_u32 v{44+i}, 0x10000, v{40+i}")
    e("  v_lshrrev_b32 v50, 4, v1")
    e("  v_lshrrev_b32 v51, 2, v1")
    e("  v_and_b32 v51, 3, v51")
    e("  v_and_b32 v52, 3, v1")
    e("  v_and_b32 v53, 1, v50")
    e("  v_lshrrev_b32 v54, 1, v50")
    e("  v_and_b32 v55, 1, v52")
    e("  v_lshlrev_b32 v55, 1, v55")
    e("  v_add_u32 v55, v55, v53")
    e("  s_lshl_b32 s40, s39, 2")
    e("  v_add_u32 v55, s40, v55")
    e("  v_lshrrev_b32 v56, 1, v51")
    e("  v_lshlrev_b32 v56, 2, v56")
    e("  v_xor_b32 v55, v55, v56")
    e("  v_lshlrev_b32 v55, 4, v55")
    e("  v_lshrrev_b32 v56, 1, v52")
    e("  v_lshlrev_b32 v56, 3, v56")
    e("  v_add_u32 v55, v55, v56")
    e("  v_lshlrev_b32 v54, 3, v54")
    e("  v_add_u32 v54, v54, v51")
    e("  v_lshlrev_b32 v54, 7, v54")
    e("  v_add_u32 v55, v55, v54")
    e("  v_add_u32 v55, 8192, v55")
    e("  v_add_u32 v56, 0x10000, v55")
    for r in range(16):
        e(f"  v_mov_b32 v{64+r}, 0")
    for j in range(NCH):
        issued = min(j+NS-2, NCH-1)
        outstanding = (issued - j)*4
        e(f"  s_waitcnt vmcnt({outstanding})")
        e("  s_barrier")
        nj = j+NS-1
        if nj < NCH:
            dma(nj)
        st = (j % NS)*STAGE
        hi = st >= 65536
        so = st - (65536 if hi else 0)
        xa = 44 if hi else 40
        wa = 56 if hi else 55
        for s in range(4):
            e(f"  ds_read_b128 v[{96+4*s}:{99+4*s}], v{xa+s} offset:{so}")
            e(f"  ds_read_b64_tr_b16 v[{80+4*s}:{81+4*s}], v{wa} offset:{so+(16*s)*128}")
            e(f"  ds_read_b64_tr_b16 v[{82+4*s}:{83+4*s}], v{wa} offset:{so+(16*s+4)*128}")
        for s in range(4):
            e(f"  s_waitcnt lgkmcnt({3*(3-s)})")
            e(f"  v_mfma_f32_32x32x16_bf16 v[64:79], v[{80+4*s}:{83+4*s}], v[{96+4*s}:{99+4*s}], v[64:79]")
    e("  s_nop 15")
    e("  s_nop 3")
    e("  s_mov_b32 s48, 0xffff0000")
    for p in range(8):
        a0, a1 = 64+2*p, 65+2*p
        e(f"  v_cvt_pk_bf16_f32 v{a0}, 0, v{a0}")
        e(f"  v_cvt_pk_bf16_f32 v{a1}, 0, v{a1}")
        e(f"  v_lshlrev_b32 v80, 16, v{32+p}")
        e(f"  v_and_b32 v81, s48, v{32+p}")
        e(f"  v_add_f32 v{a0}, v{a0}, v80")
        e(f"  v_add_f32 v{a1}, v{a1}, v81")
        e(f"  v_cvt_pk_bf16_f32 v{a0}, 0, v{a0}")
        e(f"  v_cvt_pk_bf16_f32 v{a1}, 0, v{a1}")
        e(f"  v_lshlrev_b32 v80, 16, v{16+p}")
        e(f"  v_and_b32 v81, s48, v{16+p}")
        e(f"  v_mul_f32 v{a0}, v{a0}, v80")
        e(f"  v_mul_f32 v{a1}, v{a1}, v81")
        e(f"  v_cvt_pk_bf16_f32 v{a0}, 0, v{a0}")
        e(f"  v_cvt_pk_bf16_f32 v{a1}, 0, v{a1}")
        e(f"  v_lshlrev_b32 v80, 16, v{24+p}")
        e(f"  v_and_b32 v81, s48, v{24+p}")
        e(f"  v_add_f32 v{a0}, v{a0}, v80")
        e(f"  v_add_f32 v{a1}, v{a1}, v81")
        e(f"  v_cvt_pk_bf16_f32 v{84+p}, v{a0}, v{a1}")
    e("  s_nop 1")
    e("  buffer_store_dwordx4 v[84:87], v5, s[16:19], 0 offen")
    e("  buffer_store_dwordx4 v[88:91], v5, s[16:19], 0 offen offset:16")
    e(f"L_done{l}:")
    e("  s_endpgm")

labels = [f"{NAME}_kernel"] + [f"dcn_l{l}_kernel" for l in range(1, L)]
ref = open("cdna_kernels/%s.s.ref" % NAME).read().splitlines()
for ln in ref:
    if ln.startswith("; Kernarg") or ln.startswith(";   offset"):
        e(ln)
for l in range(L):
    e(f"; @launch kernel={labels[l]} grid=(208,1,1) block=(256,1,1) lds={NS*STAGE}")
e('.amdgcn_target "amdgcn-amd-amdhsa--gfx950"')
e(".text")
for l in range(L):
    kernel(l, labels[l])
e('.section .rodata,"a"')
for l in range(L):
    e(".p2align 6")
    e(f".amdhsa_kernel {labels[l]}")
    e("  .amdhsa_next_free_vgpr 128")
    e("  .amdhsa_next_free_sgpr 64")
    e("  .amdhsa_accum_offset 128")
    e("  .amdhsa_group_segment_fixed_size 0")
    e("  .amdhsa_kernarg_size 48")
    e("  .amdhsa_user_sgpr_count 2")
    e("  .amdhsa_user_sgpr_kernarg_segment_ptr 1")
    e("  .amdhsa_system_sgpr_workgroup_id_x 1")
    e("  .amdhsa_float_denorm_mode_32 3")
    e(".end_amdhsa_kernel")
open(sys.argv[1], "w").write("\n".join(out)+"\n")
```

```python
import sys
NAME = "standalone__dcn_v2_cross__recsys"
B, D, L = 1024, 832, 6
ROWB = D*2
XBYTES = B*ROWB
WBYTES = D*ROWB
NS = 8
STAGE = 16384
NCH = 13

out = []
def e(s): out.append(s)

def kernel(l, label):
    e(f".globl {label}")
    e(".p2align 8")
    e(f".type {label},@function")
    e(f"{label}:")
    e("  s_cmp_ge_u32 s2, 208")
    e(f"  s_cbranch_scc1 L_done{l}")
    e("  s_memrealtime s[50:51]")
    e("  s_load_dwordx2 s[62:63], s[0:1], 32")
    e("  s_load_dwordx4 s[4:7], s[0:1], 0")
    e("  s_load_dwordx4 s[28:31], s[0:1], 16")
    e("  s_load_dwordx2 s[32:33], s[0:1], 40")
    e("  s_and_b32 s34, s2, 7")
    e("  s_lshr_b32 s35, s2, 3")
    e("  s_cmp_ge_u32 s35, 13")
    e("  s_cselect_b32 s36, 1, 0")
    e("  s_lshl_b32 s34, s34, 1")
    e("  s_add_u32 s34, s34, s36")
    e("  s_mul_i32 s36, s36, 13")
    e("  s_sub_u32 s35, s35, s36")
    e("  v_and_b32 v1, 63, v0")
    e("  v_lshrrev_b32 v2, 6, v0")
    e("  s_nop 0")
    e("  v_readfirstlane_b32 s37, v2")
    e("  s_waitcnt lgkmcnt(0)")
    e("  s_memrealtime s[52:53]")
    if l == 0:
        e("  s_mov_b32 s8, s4"); e("  s_mov_b32 s9, s5")
    else:
        e(f"  s_add_u32 s8, s32, {(l-1)*XBYTES}"); e("  s_addc_u32 s9, s33, 0")
    e(f"  s_mov_b32 s10, {XBYTES}"); e("  s_mov_b32 s11, 0x20000")
    e(f"  s_add_u32 s12, s6, {l*WBYTES}"); e("  s_addc_u32 s13, s7, 0")
    e(f"  s_mov_b32 s14, {WBYTES}"); e("  s_mov_b32 s15, 0x20000")
    if l == L-1:
        e("  s_mov_b32 s16, s30"); e("  s_mov_b32 s17, s31")
    else:
        e(f"  s_add_u32 s16, s32, {l*XBYTES}"); e("  s_addc_u32 s17, s33, 0")
    e(f"  s_mov_b32 s18, {XBYTES}"); e("  s_mov_b32 s19, 0x20000")
    e("  s_mov_b32 s20, s4"); e("  s_mov_b32 s21, s5")
    e(f"  s_mov_b32 s22, {XBYTES}"); e("  s_mov_b32 s23, 0x20000")
    e(f"  s_add_u32 s24, s28, {l*ROWB}"); e("  s_addc_u32 s25, s29, 0")
    e(f"  s_mov_b32 s26, {ROWB}"); e("  s_mov_b32 s27, 0x20000")
    e("  s_lshr_b32 s38, s37, 1")
    e("  s_and_b32 s39, s37, 1")
    e("  v_and_b32 v3, 31, v1")
    e("  v_lshrrev_b32 v4, 5, v1")
    e("  s_lshl_b32 s40, s34, 6")
    e("  s_lshl_b32 s41, s38, 5")
    e("  s_add_u32 s40, s40, s41")
    e("  v_add_u32 v5, s40, v3")
    e(f"  s_movk_i32 s42, {ROWB}")
    e("  v_mul_lo_u32 v5, v5, s42")
    e("  s_lshl_b32 s40, s35, 7")
    e("  s_lshl_b32 s41, s39, 6")
    e("  s_add_u32 s40, s40, s41")
    e("  v_lshlrev_b32 v6, 5, v4")
    e("  v_add_u32 v6, s40, v6")
    e("  v_add_u32 v5, v5, v6")
    e("  buffer_load_dwordx4 v[16:19], v5, s[20:23], 0 offen")
    e("  buffer_load_dwordx4 v[20:23], v5, s[20:23], 0 offen offset:16")
    e("  buffer_load_dwordx4 v[24:27], v5, s[8:11], 0 offen")
    e("  buffer_load_dwordx4 v[28:31], v5, s[8:11], 0 offen offset:16")
    e("  buffer_load_dwordx4 v[32:35], v6, s[24:27], 0 offen")
    e("  buffer_load_dwordx4 v[36:39], v6, s[24:27], 0 offen offset:16")
    e("  v_lshrrev_b32 v7, 3, v1")
    e("  v_and_b32 v8, 7, v1")
    e("  v_lshrrev_b32 v9, 1, v7")
    e("  v_xor_b32 v10, v8, v9")
    e("  v_xor_b32 v11, 4, v10")
    e("  s_lshl_b32 s40, s37, 4")
    e("  v_add_u32 v12, s40, v7")
    e("  v_mul_lo_u32 v12, v12, s42")
    e("  v_lshlrev_b32 v10, 4, v10")
    e("  v_lshlrev_b32 v11, 4, v11")
    e("  v_add_u32 v10, v10, v12")
    e("  v_add_u32 v11, v11, v12")
    e(f"  v_add_u32 v11, {8*ROWB}, v11")
    e("  v_and_b32 v9, 1, v9")
    e("  v_lshlrev_b32 v9, 2, v9")
    e("  v_xor_b32 v9, v8, v9")
    e("  v_lshlrev_b32 v9, 4, v9")
    e("  v_add_u32 v13, v9, v12")
    e(f"  v_add_u32 v14, {8*ROWB}, v13")
    e(f"  s_mul_i32 s43, s34, {64*ROWB}")
    e("  s_lshl_b32 s44, s35, 7")
    e("  s_lshl_b32 s45, s37, 11")
    def dma(j):
        st = (j % NS)*STAGE
        e(f"  s_add_u32 m0, s45, {st}")
        e(f"  s_add_u32 s46, s43, {j*128}")
        e(f"  buffer_load_dwordx4 v10, s[8:11], s46 offen lds")
        e(f"  s_add_u32 m0, s45, {st+1024}")
        e(f"  s_add_u32 s47, s44, {j*64*ROWB}")
        e(f"  buffer_load_dwordx4 v11, s[8:11], s46 offen lds")
        e(f"  s_add_u32 m0, s45, {st+8192}")
        e(f"  s_nop 0")
        e(f"  buffer_load_dwordx4 v13, s[12:15], s47 offen lds")
        e(f"  s_add_u32 m0, s45, {st+8192+1024}")
        e(f"  s_nop 0")
        e(f"  buffer_load_dwordx4 v14, s[12:15], s47 offen lds")
    for j in range(NS-1):
        dma(j)
    e("  s_lshl_b32 s40, s38, 5")
    e("  v_add_u32 v40, s40, v3")
    e("  v_lshrrev_b32 v41, 1, v40")
    e("  v_and_b32 v41, 7, v41")
    e("  v_xor_b32 v41, v41, v4")
    e("  v_lshlrev_b32 v41, 4, v41")
    e("  v_lshlrev_b32 v40, 7, v40")
    e("  v_add_u32 v40, v40, v41")
    e("  v_xor_b32 v41, 32, v40")
    e("  v_xor_b32 v42, 64, v40")
    e("  v_xor_b32 v43, 96, v40")
    for i in range(4):
        e(f"  v_add_u32 v{44+i}, 0x10000, v{40+i}")
    e("  v_lshrrev_b32 v50, 4, v1")
    e("  v_lshrrev_b32 v51, 2, v1")
    e("  v_and_b32 v51, 3, v51")
    e("  v_and_b32 v52, 3, v1")
    e("  v_and_b32 v53, 1, v50")
    e("  v_lshrrev_b32 v54, 1, v50")
    e("  v_and_b32 v55, 1, v52")
    e("  v_lshlrev_b32 v55, 1, v55")
    e("  v_add_u32 v55, v55, v53")
    e("  s_lshl_b32 s40, s39, 2")
    e("  v_add_u32 v55, s40, v55")
    e("  v_lshrrev_b32 v56, 1, v51")
    e("  v_lshlrev_b32 v56, 2, v56")
    e("  v_xor_b32 v55, v55, v56")
    e("  v_lshlrev_b32 v55, 4, v55")
    e("  v_lshrrev_b32 v56, 1, v52")
    e("  v_lshlrev_b32 v56, 3, v56")
    e("  v_add_u32 v55, v55, v56")
    e("  v_lshlrev_b32 v54, 3, v54")
    e("  v_add_u32 v54, v54, v51")
    e("  v_lshlrev_b32 v54, 7, v54")
    e("  v_add_u32 v55, v55, v54")
    e("  v_add_u32 v55, 8192, v55")
    e("  v_add_u32 v56, 0x10000, v55")
    for r in range(16):
        e(f"  v_mov_b32 v{64+r}, 0")
    for j in range(NCH):
        issued = min(j+NS-2, NCH-1)
        outstanding = (issued - j)*4
        e(f"  s_waitcnt vmcnt({outstanding})")
        e("  s_barrier")
        if j == 0: e("  s_memrealtime s[54:55]")
        if j == 6: e("  s_memrealtime s[56:57]")
        nj = j+NS-1
        if nj < NCH:
            dma(nj)
        st = (j % NS)*STAGE
        hi = st >= 65536
        so = st - (65536 if hi else 0)
        xa = 44 if hi else 40
        wa = 56 if hi else 55
        for s in range(4):
            e(f"  ds_read_b128 v[{96+4*s}:{99+4*s}], v{xa+s} offset:{so}")
            e(f"  ds_read_b64_tr_b16 v[{80+4*s}:{81+4*s}], v{wa} offset:{so+(16*s)*128}")
            e(f"  ds_read_b64_tr_b16 v[{82+4*s}:{83+4*s}], v{wa} offset:{so+(16*s+4)*128}")
        for s in range(4):
            e(f"  s_waitcnt lgkmcnt({3*(3-s)})")
            e(f"  v_mfma_f32_32x32x16_bf16 v[64:79], v[{80+4*s}:{83+4*s}], v[{96+4*s}:{99+4*s}], v[64:79]")
    e("  s_memrealtime s[58:59]")
    e("  s_nop 15")
    e("  s_nop 3")
    e("  s_mov_b32 s48, 0xffff0000")
    for p in range(8):
        a0, a1 = 64+2*p, 65+2*p
        e(f"  v_cvt_pk_bf16_f32 v{a0}, 0, v{a0}")
        e(f"  v_cvt_pk_bf16_f32 v{a1}, 0, v{a1}")
        e(f"  v_lshlrev_b32 v80, 16, v{32+p}")
        e(f"  v_and_b32 v81, s48, v{32+p}")
        e(f"  v_add_f32 v{a0}, v{a0}, v80")
        e(f"  v_add_f32 v{a1}, v{a1}, v81")
        e(f"  v_cvt_pk_bf16_f32 v{a0}, 0, v{a0}")
        e(f"  v_cvt_pk_bf16_f32 v{a1}, 0, v{a1}")
        e(f"  v_lshlrev_b32 v80, 16, v{16+p}")
        e(f"  v_and_b32 v81, s48, v{16+p}")
        e(f"  v_mul_f32 v{a0}, v{a0}, v80")
        e(f"  v_mul_f32 v{a1}, v{a1}, v81")
        e(f"  v_cvt_pk_bf16_f32 v{a0}, 0, v{a0}")
        e(f"  v_cvt_pk_bf16_f32 v{a1}, 0, v{a1}")
        e(f"  v_lshlrev_b32 v80, 16, v{24+p}")
        e(f"  v_and_b32 v81, s48, v{24+p}")
        e(f"  v_add_f32 v{a0}, v{a0}, v80")
        e(f"  v_add_f32 v{a1}, v{a1}, v81")
        e(f"  v_cvt_pk_bf16_f32 v{84+p}, v{a0}, v{a1}")
    e("  s_nop 1")
    e("  buffer_store_dwordx4 v[84:87], v5, s[16:19], 0 offen")
    e("  buffer_store_dwordx4 v[88:91], v5, s[16:19], 0 offen offset:16")
    e("  s_waitcnt vmcnt(0)")
    e("  s_memrealtime s[60:61]")
    e("  s_waitcnt lgkmcnt(0)")
    e("  s_cmp_eq_u32 s2, 0")
    e("  s_cselect_b32 s40, 0, 32")
    e("  s_cmp_eq_u32 s2, 0")
    e(f"  s_cbranch_scc1 L_st{l}")
    e("  s_cmp_eq_u32 s2, 207")
    e(f"  s_cbranch_scc0 L_done{l}")
    e(f"L_st{l}:")
    e("  s_mov_b32 s8, s62"); e("  s_mov_b32 s9, s63"); e("  s_mov_b32 s10, 256"); e("  s_mov_b32 s11, 0x20000")
    e("  v_mov_b32 v1, s50")
    for k in range(1,6):
        e(f"  s_sub_u32 s41, s{50+2*k}, s50")
        e(f"  v_writelane_b32 v1, s41, {k}")
    e("  v_lshlrev_b32 v2, 2, v0")
    e("  v_add_u32 v2, s40, v2")
    e("  v_cmp_gt_u32 vcc, 8, v0")
    e("  s_and_saveexec_b64 s[42:43], vcc")
    e(f"  s_cbranch_execz L_done{l}")
    e("  buffer_store_dword v1, v2, s[8:11], 0 offen")
    e(f"L_done{l}:")
    e("  s_endpgm")

labels = [f"{NAME}_kernel"] + [f"dcn_l{l}_kernel" for l in range(1, L)]
ref = open("cdna_kernels/%s.s.ref" % NAME).read().splitlines()
for ln in ref:
    if ln.startswith("; Kernarg") or ln.startswith(";   offset"):
        e(ln)
for l in range(L):
    e(f"; @launch kernel={labels[l]} grid=(208,1,1) block=(256,1,1) lds={NS*STAGE}")
e('.amdgcn_target "amdgcn-amd-amdhsa--gfx950"')
e(".text")
for l in range(L):
    kernel(l, labels[l])
e('.section .rodata,"a"')
for l in range(L):
    e(".p2align 6")
    e(f".amdhsa_kernel {labels[l]}")
    e("  .amdhsa_next_free_vgpr 128")
    e("  .amdhsa_next_free_sgpr 64")
    e("  .amdhsa_accum_offset 128")
    e("  .amdhsa_group_segment_fixed_size 0")
    e("  .amdhsa_kernarg_size 48")
    e("  .amdhsa_user_sgpr_count 2")
    e("  .amdhsa_user_sgpr_kernarg_segment_ptr 1")
    e("  .amdhsa_system_sgpr_workgroup_id_x 1")
    e("  .amdhsa_float_denorm_mode_32 3")
    e(".end_amdhsa_kernel")
open(sys.argv[1], "w").write("\n".join(out)+"\n")
```
